```python
import torch

def _softmax(x, axis=-1):
    return torch.softmax(x, dim=axis)
def _gelu(x):
    return torch.nn.functional.gelu(x, approximate="tanh")
def _silu(x):
    return torch.nn.functional.silu(x)
def _sigmoid(x):
    return torch.sigmoid(x)
def _layernorm(x, axis=-1, eps=1e-5):
    m = x.mean(dim=axis, keepdim=True)
    v = x.var(dim=axis, keepdim=True, unbiased=False)
    return (x - m) / torch.sqrt(v + eps)
def _scatter_add(tgt, idx, src, axis=0):
    return tgt.clone().index_add_(axis, idx, src)
def _segment_sum(src, seg, n):
    out = torch.zeros((n,) + src.shape[1:], dtype=src.dtype)
    return out.index_add_(0, seg, src)
def _pad(x, pw):
    flat = tuple(v for pair in reversed(pw) for v in pair)
    return torch.nn.functional.pad(x, flat)

kernel_name = 'gated_mix__linear_kernel_hedgehog__moe_arch_mod__prompt'

def setup_inputs():

    _w = (lambda a: (lambda t: t.to(torch.bfloat16) if t.is_floating_point() else t)(torch.as_tensor(a)))
    def _A_setup():
        B, S, D, H = 1, 2048, 1024, 32
        Dh = D // H
        return {
            "x": _w((lambda *s: torch.randn(*s, dtype=torch.bfloat16) * 0.05)(B, S, D)),
            "wqkv": _w((lambda *s: torch.randn(*s, dtype=torch.bfloat16) * 1.6)(D, 3 * D)),
            "w_phi": _w((lambda *s: torch.randn(*s, dtype=torch.bfloat16) * 1.6)(H, Dh, Dh) * (Dh ** -0.5)),
            "wo": _w((lambda *s: torch.randn(*s, dtype=torch.bfloat16) * 1.6)(D, D)),
        }
    _A_in = _A_setup()

    def _B_setup():
        B, S, D, F, C = 1, 2048, 1024, 3584, 1
        return {
            "x": _w((lambda *s: torch.randn(*s, dtype=torch.bfloat16) * 0.05)(B, S, D)),
            "w_r": _w((lambda *s: torch.randn(*s, dtype=torch.bfloat16) * 1.6)(D)),
            "w_gate": _w((lambda *s: torch.randn(*s, dtype=torch.bfloat16) * 0.8)(D, F)),
            "w_up": _w((lambda *s: torch.randn(*s, dtype=torch.bfloat16) * 0.8)(D, F)),
            "w_down": _w((lambda *s: torch.randn(*s, dtype=torch.bfloat16) * 0.8)(F, D)),
        }
    _B_in = _B_setup()

    return {
        "A_x": _A_in["x"],
        "A_wqkv": _A_in["wqkv"],
        "A_w_phi": _A_in["w_phi"],
        "A_wo": _A_in["wo"],
        "B_x": _B_in["x"],
        "B_w_r": _B_in["w_r"],
        "B_w_gate": _B_in["w_gate"],
        "B_w_up": _B_in["w_up"],
        "B_w_down": _B_in["w_down"],
        "gate_w": _w((lambda *s: torch.randn(*s, dtype=torch.bfloat16) * 0.05)(1024) * 16.0),
    }

def reference(A_x, A_wqkv, A_w_phi, A_wo, B_x, B_w_r, B_w_gate, B_w_up, B_w_down, gate_w):
    def _A_ref(x, wqkv, w_phi, wo):
        B, S, D = x.shape
        H = 32; Dh = D // H
        qkv = (lambda x, *d: x.permute(*d))((x @ wqkv).reshape(B, S, 3, H, Dh), 2, 0, 3, 1, 4)
        q, k, v = qkv[0], qkv[1], qkv[2]
        pq = torch.einsum("bhsd,hdf->bhsf", q, w_phi)
        pk = torch.einsum("bhsd,hdf->bhsf", k, w_phi)
        phi_q = torch.concatenate([_softmax(pq, axis=-1), _softmax(-pq, axis=-1)], axis=-1)
        phi_k = torch.concatenate([_softmax(pk, axis=-1), _softmax(-pk, axis=-1)], axis=-1)
        kv = torch.einsum("bhsf,bhsd->bhfd", phi_k, v)
        z  = torch.einsum("bhsf->bhf", phi_k)
        num = torch.einsum("bhqf,bhfd->bhqd", phi_q, kv)
        den = torch.einsum("bhqf,bhf->bhq", phi_q, z)[..., None] + 1e-6
        o = num / den
        return (lambda x, *d: x.permute(*d))(o, 0, 2, 1, 3).reshape(B, S, D) @ wo

    def _B_ref(x, w_r, w_gate, w_up, w_down):
        B, S, D = x.shape
        C = 1
        r = x @ w_r
        idx = torch.argsort(-r, axis=-1)[:, :C]
        idx_e = (lambda x, n, axis: torch.repeat_interleave(x, n, dim=axis))(idx.reshape(B, C, 1), D, axis=2)
        x_sel = (lambda x, i, axis: torch.take_along_dim(x, i, dim=axis))(x, idx_e, axis=1)
        g = _silu(x_sel @ w_gate)
        u = x_sel @ w_up
        y = (g * u) @ w_down
        r_sel = _sigmoid((lambda x, i, axis: torch.take_along_dim(x, i, dim=axis))(r, idx, axis=1))
        y = y * r_sel.reshape(B, C, 1)
        b_off = (torch.arange(B) * S).reshape(B, 1)
        flat_idx = (idx + b_off).reshape(B * C)
        zero = (x * 0.0).reshape(B * S, D)
        upd = _scatter_add(zero, flat_idx, y.reshape(B * C, D), axis=0)
        return x + upd.reshape(B, S, D)

    x = A_x
    g = _sigmoid((x * gate_w).sum(-1, keepdims=True))
    a = _A_ref(x, A_wqkv, A_w_phi, A_wo)
    b = _B_ref(x, B_w_r, B_w_gate, B_w_up, B_w_down)
    return g * a + (1 - g) * b
```

```python
import re

TRANS = ('v_exp_f32', 'v_log_f32', 'v_rcp_f32', 'v_rsq_f32', 'v_sqrt_f32', 'v_sin_f32', 'v_cos_f32')

def _regs(tok):
    tok = tok.strip()
    tok = tok.lstrip('-')
    if tok.startswith('abs(') or tok.startswith('|'):
        tok = tok.replace('abs(', '').replace(')', '').replace('|', '')
    m = re.fullmatch(r'([vsa])(\d+)', tok)
    if m:
        return {(m.group(1), int(m.group(2)))}
    m = re.fullmatch(r'([vsa])\[(\d+):(\d+)\]', tok)
    if m:
        return {(m.group(1), i) for i in range(int(m.group(2)), int(m.group(3)) + 1)}
    if tok in ('vcc', 'vcc_lo', 'vcc_hi'):
        return {('x', 'vcc')}
    if tok in ('exec', 'exec_lo', 'exec_hi'):
        return {('x', 'exec')}
    if tok == 'm0':
        return {('x', 'm0')}
    return set()

def split_ops(s):
    out, depth, cur = [], 0, ''
    for ch in s:
        if ch in '[(':
            depth += 1
        if ch in '])':
            depth -= 1
        if ch == ',' and depth == 0:
            out.append(cur.strip()); cur = ''
        else:
            cur += ch
    if cur.strip():
        out.append(cur.strip())
    return out

class I:
    __slots__ = ('text', 'mn', 'ops', 'wr', 'rd', 'kind', 'srcc', 'passes', 'dpp', 'nop', 'stdata', 'lds_dma', 'label')
    def __init__(self, text):
        self.text = text
        self.label = False
        t = text.split(';')[0].strip()
        self.wr, self.rd = set(), set()
        self.srcc = set(); self.passes = 0; self.dpp = False; self.nop = 1; self.stdata = set(); self.lds_dma = False
        if t.endswith(':') or t == '' or t.startswith('.'):
            self.kind = 'label' if t.endswith(':') else 'none'
            self.mn = ''; self.ops = []
            self.nop = 0
            self.label = t.endswith(':')
            return
        parts = t.split(None, 1)
        mn = parts[0]; self.mn = mn
        rest = parts[1] if len(parts) > 1 else ''
        ops = split_ops(rest)
        mods = ''
        if ops:
            l = ops[-1].split(None, 1)
            if len(l) > 1 and not ops[-1].startswith('vmcnt') and not ops[-1].startswith('lgkmcnt'):
                ops[-1] = l[0]; mods = l[1]
        self.ops = ops
        self.dpp = ('_dpp' in mn) or ('row_' in mods) or ('quad_perm' in mods)
        R = [_regs(o) for o in ops]
        if mn == 's_nop':
            self.kind = 'nop'; self.nop = int(ops[0], 0) + 1
        elif mn.startswith('v_mfma'):
            self.kind = 'mfma'
            self.wr = R[0]; self.rd = R[1] | R[2] | R[3]; self.srcc = R[3]
            self.passes = 8 if '32x32' in mn else 4
        elif mn.startswith('v_'):
            self.kind = 'valu'
            if mn.startswith('v_cmp'):
                self.wr = R[0]; self.rd = set().union(*R[1:])
            elif mn.startswith('v_permlane') and 'swap' in mn:
                self.wr = R[0] | R[1]; self.rd = R[0] | R[1]
            elif mn.startswith('v_readlane') or mn.startswith('v_readfirstlane'):
                self.wr = R[0]; self.rd = set().union(*R[1:])
            elif mn in ('v_add_co_u32', 'v_sub_co_u32', 'v_addc_co_u32'):
                self.wr = R[0] | R[1]; self.rd = set().union(*R[2:])
            else:
                self.wr = R[0]; self.rd = set().union(*R[1:]) if len(R) > 1 else set()
                if mn.startswith('v_fmac') or mn.startswith('v_dot2c') or self.dpp or 'sdwa' in mn or mn.startswith('v_writelane'):
                    self.rd |= R[0]
                if mn.startswith('v_cndmask') and len(ops) == 3:
                    self.rd |= {('x', 'vcc')}
        elif mn.startswith('buffer_') or mn.startswith('global_'):
            self.kind = 'vmem'
            self.lds_dma = (' lds' in (' ' + mods)) or ('load_lds' in mn)
            if 'store' in mn or 'atomic' in mn:
                self.rd = set().union(*R)
                if mn.startswith('buffer_'):
                    data = R[0]
                else:
                    data = R[1]
                if 'x4' in mn or 'x3' in mn:
                    self.stdata = data
                if 'atomic' in mn and 'sc0' in mods:
                    self.wr = data
            elif self.lds_dma:
                self.rd = set().union(*R) | {('x', 'm0')}
            else:
                self.wr = R[0]; self.rd = set().union(*R[1:])
                if 'd16' in mn:
                    self.rd |= R[0]
        elif mn.startswith('ds_'):
            self.kind = 'ds'
            if 'read' in mn or 'permute' in mn or 'swizzle' in mn:
                self.wr = R[0]; self.rd = set().union(*R[1:])
            else:
                self.rd = set().union(*R)
        elif mn.startswith('s_'):
            self.kind = 'salu'
            if mn.startswith('s_cmp') or mn.startswith('s_cbranch') or mn in ('s_branch', 's_barrier', 's_waitcnt', 's_endpgm', 's_sleep', 's_setprio'):
                self.rd = set().union(*R) if R else set()
            else:
                self.wr = R[0] if R else set()
                self.rd = set().union(*R[1:]) if len(R) > 1 else set()
                if 'saveexec' in mn:
                    self.wr |= {('x', 'exec')}
        else:
            raise ValueError('unknown instr ' + text)

def _v(s):
    return {r for r in s if r[0] in 'va'}
def _sg(s):
    return {r for r in s if r[0] == 's' or r == ('x', 'vcc')}

def need(p, c):
    n = 0
    if p.kind == 'valu':
        pw = _v(p.wr)
        if c.kind == 'mfma' and pw & c.rd: n = max(n, 2)
        if c.kind == 'valu':
            if p.mn in TRANS and c.mn not in TRANS and pw & c.rd: n = max(n, 1)
            if c.mn.startswith('v_permlane') and pw & c.rd: n = max(n, 2)
            if c.dpp and pw & c.rd: n = max(n, 2)
            if (c.mn.startswith('v_readlane') or c.mn.startswith('v_readfirstlane')) and pw & c.rd: n = max(n, 1)
            if _sg(p.wr) & c.rd:
                n = max(n, 4 if (c.mn.startswith('v_readlane') or c.mn.startswith('v_writelane')) else 2)
            if ('sdwa' in p.mn or ('op_sel' in p.text and not p.mn.startswith('v_pk_'))) and pw & (c.rd | c.wr): n = max(n, 1)
        if p.mn.startswith('v_dot') and c.kind in ('valu', 'mfma', 'vmem', 'ds') and pw & (c.rd | c.wr):
            if c.mn == p.mn and not (pw & (_regs(c.ops[1]) | _regs(c.ops[2]))): pass
            else: n = max(n, 3)
        if c.kind == 'vmem' and _sg(p.wr) & c.rd: n = max(n, 5)
        if c.kind == 'salu' and _sg(p.wr) & c.rd: n = max(n, 2)
        if c.kind == 'mfma' and ('x', 'exec') in p.wr: n = max(n, 4)
    if p.kind == 'mfma':
        big = 12 if p.passes == 8 else 8
        if c.kind == 'mfma':
            ab = c.rd - c.srcc if c.srcc != c.rd else set()
            ab = _regs(c.ops[1]) | _regs(c.ops[2])
            if p.wr & ab: n = max(n, big)
            if p.wr & c.srcc:
                if p.wr == c.srcc and p.passes == c.passes: n = max(n, 0)
                else: n = max(n, 10 if p.passes == 8 else 6)
            elif p.wr & c.wr:
                n = max(n, 10 if p.passes == 8 else 6)
        elif c.kind in ('valu', 'vmem', 'ds'):
            if p.wr & (c.rd | c.wr): n = max(n, big)
            if c.kind == 'valu' and p.srcc & c.wr: n = max(n, 7 if p.passes == 8 else 3)
    if p.kind == 'salu' and ('x', 'm0') in p.wr and c.kind == 'vmem' and c.lds_dma: n = max(n, 1)
    if p.kind == 'vmem' and p.stdata:
        if c.kind == 'valu' and p.stdata & c.wr: n = max(n, 2)
        elif p.stdata & c.wr: n = max(n, 1)
    return n

class Asm:
    def __init__(self):
        self.lines = []
    def __call__(self, text):
        for ln in text.split('\n'):
            ln = ln.strip()
            if ln:
                self.emit(ln)
    def emit(self, text):
        c = I(text)
        if c.kind not in ('label', 'none', 'nop'):
            dist = 0; req = 0
            for p in reversed(self.lines):
                if dist >= 20: break
                if p.kind not in ('label', 'none', 'nop'):
                    r = need(p, c)
                    if r > dist: req = max(req, r - dist)
                dist += p.nop
            while req > 0:
                k = min(req, 16)
                self.lines.append(I('s_nop %d' % (k - 1)))
                req -= k
        self.lines.append(c)
    def raw(self, text):
        i = I('; raw'); i.text = text; i.kind = 'none'; i.nop = 0
        self.lines.append(i)
    def text(self):
        out = []
        for i in self.lines:
            if i.kind == 'label' or i.text.startswith('.') or i.kind == 'none':
                out.append(i.text)
            else:
                out.append('    ' + i.text)
        return '\n'.join(out) + '\n'

def vr(a, n=1):
    return 'v%d' % a if n == 1 else 'v[%d:%d]' % (a, a + n - 1)
def sr(a, n=1):
    return 's%d' % a if n == 1 else 's[%d:%d]' % (a, a + n - 1)
```

```python
from asmlib import *
WS_BYTES = 32 << 20
OFF_PQ = 0
OFF_KVP = 4 << 20
OFF_ZP = 8 << 20
OFF_KEY = OFF_ZP + (128 << 10)
OFF_G = OFF_KEY + 8192
OFF_SEL = OFF_G + 8192
OFF_FLAG = OFF_SEL + 2048
OFF_GU = OFF_FLAG + 2048
OFF_O = 16 << 20
OFF_OFLAG = (11 << 20) + 65536
OFF_YFLAG = OFF_OFLAG + 1024
OFF_CNT = 11 << 20
OFF_YP = 10 << 20

def srd(A, d, ptr, nbytes):
    A('s_mov_b32 s%d, s%d' % (d, ptr))
    A('s_and_b32 s%d, s%d, 0xffff' % (d + 1, ptr + 1))
    A('s_mov_b32 s%d, %d' % (d + 2, nbytes))
    A('s_mov_b32 s%d, 0x00020000' % (d + 3))

def unpack(A, dst, src, n=8):
    for i in range(n):
        A('v_lshlrev_b32 v%d, 16, v%d' % (dst + 2 * i, src + i))
        A('v_and_b32 v%d, 0xffff0000, v%d' % (dst + 2 * i + 1, src + i))

def wave_sum(A, regs, op='v_add_f32'):
    for mod in ('row_shr:1', 'row_shr:2', 'row_shr:4', 'row_shr:8'):
        for r in regs:
            A('%s_dpp v%d, v%d, v%d %s row_mask:0xf bank_mask:0xf' % (op, r, r, r, mod))
    for r in regs:
        A('%s_dpp v%d, v%d, v%d row_bcast:15 row_mask:0xa bank_mask:0xf' % (op, r, r, r))
    for r in regs:
        A('%s_dpp v%d, v%d, v%d row_bcast:31 row_mask:0xc bank_mask:0xf' % (op, r, r, r))

def softmax_pm(A, P, EP, EM, BP, BM, tmp, sL, sNL, inplace=False):
    t = tmp
    assert t % 2 == 0 and P % 2 == 0 and EP % 2 == 0 and EM % 2 == 0 and sL % 2 == 0 and sNL % 2 == 0
    u = t + 6
    def tree(op3, op2, d):
        A('%s v%d, v%d, v%d, v%d' % (op3, d, P, P + 1, P + 2))
        A('%s v%d, v%d, v%d, v%d' % (op3, d + 1, P + 3, P + 4, P + 5))
        A('%s v%d, v%d, v%d, v%d' % (op3, d + 2, P + 6, P + 7, P + 8))
        A('%s v%d, v%d, v%d, v%d' % (op3, d + 3, P + 9, P + 10, P + 11))
        A('%s v%d, v%d, v%d, v%d' % (op3, d + 4, P + 12, P + 13, P + 14))
        A('%s v%d, v%d, v%d, v%d' % (op3, d, d, d + 1, P + 15))
        A('%s v%d, v%d, v%d, v%d' % (op3, d + 2, d + 2, d + 3, d + 4))
        A('%s v%d, v%d, v%d' % (op2, d, d, d + 2))
    tree('v_max3_f32', 'v_max_f32', t)
    tree('v_min3_f32', 'v_min_f32', u)
    A('v_mov_b32 v%d, v%d' % (t + 1, t))
    A('v_mov_b32 v%d, v%d' % (u + 1, u))
    A('v_permlane32_swap_b32 v%d, v%d' % (t, t + 1))
    A('v_permlane32_swap_b32 v%d, v%d' % (u, u + 1))
    A('v_max_f32 v%d, v%d, v%d' % (t, t, t + 1))
    A('v_min_f32 v%d, v%d, v%d' % (u, u, u + 1))
    A('v_mul_f32 v%d, s%d, v%d' % (t, sNL, t))
    A('v_mul_f32 v%d, s%d, v%d' % (u, sL, u))
    for i in range(8):
        A('v_pk_fma_f32 %s, %s, %s, %s op_sel_hi:[1,0,0]' % (vr(EP + 2 * i, 2), vr(P + 2 * i, 2), sr(sL, 2), vr(t, 2)))
        A('v_pk_fma_f32 %s, %s, %s, %s op_sel_hi:[1,0,0]' % (vr(EM + 2 * i, 2), vr(P + 2 * i, 2), sr(sNL, 2), vr(u, 2)))
    for i in range(16):
        A('v_exp_f32 v%d, v%d' % (EP + i, EP + i))
        A('v_exp_f32 v%d, v%d' % (EM + i, EM + i))
    for (E, d) in ((EP, t), (EM, u)):
        A('v_pk_add_f32 %s, %s, %s' % (vr(d, 2), vr(E, 2), vr(E + 2, 2)))
        A('v_pk_add_f32 %s, %s, %s' % (vr(d + 2, 2), vr(E + 4, 2), vr(E + 6, 2)))
        A('v_pk_add_f32 %s, %s, %s' % (vr(d + 4, 2), vr(E + 8, 2), vr(E + 10, 2)))
    for (E, d) in ((EP, t), (EM, u)):
        A('v_pk_add_f32 %s, %s, %s' % (vr(d, 2), vr(d, 2), vr(E + 12, 2)))
        A('v_pk_add_f32 %s, %s, %s' % (vr(d + 2, 2), vr(d + 2, 2), vr(E + 14, 2)))
    for d in (t, u):
        A('v_pk_add_f32 %s, %s, %s' % (vr(d, 2), vr(d, 2), vr(d + 4, 2)))
    for d in (t, u):
        A('v_pk_add_f32 %s, %s, %s' % (vr(d, 2), vr(d, 2), vr(d + 2, 2)))
    for d in (t, u):
        A('v_add_f32 v%d, v%d, v%d' % (d, d, d + 1))
    A('v_mov_b32 v%d, v%d' % (t + 1, t))
    A('v_mov_b32 v%d, v%d' % (u + 1, u))
    A('v_permlane32_swap_b32 v%d, v%d' % (t, t + 1))
    A('v_permlane32_swap_b32 v%d, v%d' % (u, u + 1))
    A('v_add_f32 v%d, v%d, v%d' % (t, t, t + 1))
    A('v_add_f32 v%d, v%d, v%d' % (u, u, u + 1))
    A('v_rcp_f32 v%d, v%d' % (t, t))
    A('v_rcp_f32 v%d, v%d' % (u, u))
    for i in range(8):
        A('v_pk_mul_f32 %s, %s, %s op_sel_hi:[1,0]' % (vr(EP + 2 * i, 2), vr(EP + 2 * i, 2), vr(t, 2)))
        A('v_pk_mul_f32 %s, %s, %s op_sel_hi:[1,0]' % (vr(EM + 2 * i, 2), vr(EM + 2 * i, 2), vr(u, 2)))
    for i in range(8):
        A('v_cvt_pk_bf16_f32 v%d, v%d, v%d' % (BP + i, EP + 2 * i, EP + 2 * i + 1))
        A('v_cvt_pk_bf16_f32 v%d, v%d, v%d' % (BM + i, EM + 2 * i, EM + 2 * i + 1))


def code_touch(A, tag, start, end, lpw, s_j, sp, v0, v1, s_tmp):
    A('s_getpc_b64 s[%d:%d]' % (sp, sp + 1))
    A('L_pc_%s:' % tag)
    A('s_add_u32 s%d, s%d, %s-L_pc_%s' % (sp, sp, start, tag))
    A('s_addc_u32 s%d, s%d, %s' % (sp + 1, sp + 1, '-1' if tag.startswith('b') else '0'))
    A('s_mul_i32 s%d, s%d, %d' % (s_tmp, s_j, lpw))
    A('v_add_u32 v%d, s%d, v2' % (v0, s_tmp))
    A('v_lshlrev_b32 v%d, 7, v%d' % (v0, v0))
    A('v_cmp_gt_u32 vcc, %s-%s, v%d' % (end, start, v0))
    A('s_and_b32 vcc_lo, vcc_lo, %d' % ((1 << lpw) - 1))
    A('s_mov_b32 vcc_hi, 0')
    A('s_mov_b64 exec, vcc')
    A('s_cbranch_execz L_ct_%s' % tag)
    A('global_load_dword v%d, v%d, s[%d:%d]' % (v1, v0, sp, sp + 1))
    A('L_ct_%s:' % tag)
    A('s_mov_b64 exec, -1')


def xcd_slot(A, tag, srd_, off, shift, lds_addr, v0, v1):
    A('v_mov_b32 v%d, %d' % (v1, lds_addr))
    A('s_cmp_lg_u32 s20, 0')
    A('s_cbranch_scc1 L_xs_%s_w' % tag)
    A('s_getreg_b32 s16, hwreg(HW_REG_XCC_ID)')
    A('s_and_b32 s16, s16, 7')
    A('s_lshr_b32 s17, s2, 6')
    A('s_lshl_b32 s48, s16, 2')
    A('s_add_u32 s48, s48, s17')
    A('s_mov_b32 s49, 0')
    A('s_mov_b64 exec, 1')
    A('L_xs_%s_t:' % tag)
    A('s_lshl_b32 s50, s48, %d' % shift)
    A('s_add_u32 s50, s50, %d' % off)
    A('v_mov_b32 v%d, 1' % v0)
    A('v_mov_b32 v%d, s50' % (v0 + 1))
    A('buffer_atomic_add v%d, v%d, s[%d:%d], 0 offen sc0' % (v0, v0 + 1, srd_, srd_ + 3))
    A('s_waitcnt vmcnt(0)')
    A('v_readfirstlane_b32 s51, v%d' % v0)
    A('s_cmp_lt_u32 s51, 8')
    A('s_cbranch_scc1 L_xs_%s_k' % tag)
    A('s_add_u32 s48, s48, 1')
    A('s_and_b32 s48, s48, 31')
    A('s_add_u32 s49, s49, 1')
    A('s_cmp_lt_u32 s49, 64')
    A('s_cbranch_scc1 L_xs_%s_t' % tag)
    A('s_mov_b32 s51, 0')
    A('L_xs_%s_k:' % tag)
    A('s_lshl_b32 s48, s48, 3')
    A('s_add_u32 s48, s48, s51')
    A('v_mov_b32 v%d, s48' % v0)
    A('ds_write_b32 v%d, v%d' % (v1, v0))
    A('s_mov_b64 exec, -1')
    A('s_waitcnt lgkmcnt(0)')
    A('L_xs_%s_w:' % tag)
    A('s_barrier')
    A('ds_read_b32 v%d, v%d' % (v0, v1))
    A('s_waitcnt lgkmcnt(0)')
    A('v_readfirstlane_b32 s17, v%d' % v0)
    A('s_lshr_b32 s16, s17, 5')
    A('s_and_b32 s17, s17, 31')
```

```python
import re

TRANS = ('v_exp_f32', 'v_log_f32', 'v_rcp_f32', 'v_rsq_f32', 'v_sqrt_f32', 'v_sin_f32', 'v_cos_f32')

def _regs(tok):
    tok = tok.strip()
    tok = tok.lstrip('-')
    if tok.startswith('abs(') or tok.startswith('|'):
        tok = tok.replace('abs(', '').replace(')', '').replace('|', '')
    m = re.fullmatch(r'([vsa])(\d+)', tok)
    if m:
        return {(m.group(1), int(m.group(2)))}
    m = re.fullmatch(r'([vsa])\[(\d+):(\d+)\]', tok)
    if m:
        return {(m.group(1), i) for i in range(int(m.group(2)), int(m.group(3)) + 1)}
    if tok in ('vcc', 'vcc_lo', 'vcc_hi'):
        return {('x', 'vcc')}
    if tok in ('exec', 'exec_lo', 'exec_hi'):
        return {('x', 'exec')}
    if tok == 'm0':
        return {('x', 'm0')}
    return set()

def split_ops(s):
    out, depth, cur = [], 0, ''
    for ch in s:
        if ch in '[(':
            depth += 1
        if ch in '])':
            depth -= 1
        if ch == ',' and depth == 0:
            out.append(cur.strip()); cur = ''
        else:
            cur += ch
    if cur.strip():
        out.append(cur.strip())
    return out

class I:
    __slots__ = ('text', 'mn', 'ops', 'wr', 'rd', 'kind', 'srcc', 'passes', 'dpp', 'nop', 'stdata', 'lds_dma', 'label')
    def __init__(self, text):
        self.text = text
        self.label = False
        t = text.split(';')[0].strip()
        self.wr, self.rd = set(), set()
        self.srcc = set(); self.passes = 0; self.dpp = False; self.nop = 1; self.stdata = set(); self.lds_dma = False
        if t.endswith(':') or t == '' or t.startswith('.'):
            self.kind = 'label' if t.endswith(':') else 'none'
            self.mn = ''; self.ops = []
            self.nop = 0
            self.label = t.endswith(':')
            return
        parts = t.split(None, 1)
        mn = parts[0]; self.mn = mn
        rest = parts[1] if len(parts) > 1 else ''
        ops = split_ops(rest)
        mods = ''
        if ops:
            l = ops[-1].split(None, 1)
            if len(l) > 1 and not ops[-1].startswith('vmcnt') and not ops[-1].startswith('lgkmcnt'):
                ops[-1] = l[0]; mods = l[1]
        self.ops = ops
        self.dpp = ('_dpp' in mn) or ('row_' in mods) or ('quad_perm' in mods)
        R = [_regs(o) for o in ops]
        if mn == 's_nop':
            self.kind = 'nop'; self.nop = int(ops[0], 0) + 1
        elif mn.startswith('v_mfma'):
            self.kind = 'mfma'
            self.wr = R[0]; self.rd = R[1] | R[2] | R[3]; self.srcc = R[3]
            self.passes = 8 if '32x32' in mn else 4
        elif mn.startswith('v_'):
            self.kind = 'valu'
            if mn.startswith('v_cmp'):
                self.wr = R[0]; self.rd = set().union(*R[1:])
            elif mn.startswith('v_permlane') and 'swap' in mn:
                self.wr = R[0] | R[1]; self.rd = R[0] | R[1]
            elif mn.startswith('v_readlane') or mn.startswith('v_readfirstlane'):
                self.wr = R[0]; self.rd = set().union(*R[1:])
            elif mn in ('v_add_co_u32', 'v_sub_co_u32', 'v_addc_co_u32'):
                self.wr = R[0] | R[1]; self.rd = set().union(*R[2:])
            else:
                self.wr = R[0]; self.rd = set().union(*R[1:]) if len(R) > 1 else set()
                if mn.startswith('v_fmac') or mn.startswith('v_dot2c') or self.dpp or 'sdwa' in mn or mn.startswith('v_writelane'):
                    self.rd |= R[0]
                if mn.startswith('v_cndmask') and len(ops) == 3:
                    self.rd |= {('x', 'vcc')}
        elif mn.startswith('buffer_') or mn.startswith('global_'):
            self.kind = 'vmem'
            self.lds_dma = (' lds' in (' ' + mods)) or ('load_lds' in mn)
            if 'store' in mn or 'atomic' in mn:
                self.rd = set().union(*R)
                if mn.startswith('buffer_'):
                    data = R[0]
                else:
                    data = R[1]
                if 'x4' in mn or 'x3' in mn:
                    self.stdata = data
                if 'atomic' in mn and 'sc0' in mods:
                    self.wr = data
            elif self.lds_dma:
                self.rd = set().union(*R) | {('x', 'm0')}
            else:
                self.wr = R[0]; self.rd = set().union(*R[1:])
                if 'd16' in mn:
                    self.rd |= R[0]
        elif mn.startswith('ds_'):
            self.kind = 'ds'
            if 'read' in mn or 'permute' in mn or 'swizzle' in mn or '_rtn' in mn:
                self.wr = R[0]; self.rd = set().union(*R[1:])
            else:
                self.rd = set().union(*R)
        elif mn.startswith('s_'):
            self.kind = 'salu'
            if mn.startswith('s_cmp') or mn.startswith('s_cbranch') or mn in ('s_branch', 's_barrier', 's_waitcnt', 's_endpgm', 's_sleep', 's_setprio'):
                self.rd = set().union(*R) if R else set()
            else:
                self.wr = R[0] if R else set()
                self.rd = set().union(*R[1:]) if len(R) > 1 else set()
                if 'saveexec' in mn:
                    self.wr |= {('x', 'exec')}
        else:
            raise ValueError('unknown instr ' + text)

def _v(s):
    return {r for r in s if r[0] in 'va'}
def _sg(s):
    return {r for r in s if r[0] == 's' or r == ('x', 'vcc')}

def need(p, c):
    n = 0
    if p.kind == 'valu':
        pw = _v(p.wr)
        if c.kind == 'mfma' and pw & c.rd: n = max(n, 2)
        if c.kind == 'valu':
            if p.mn in TRANS and c.mn not in TRANS and pw & c.rd: n = max(n, 1)
            if c.mn.startswith('v_permlane') and pw & c.rd: n = max(n, 2)
            if c.dpp and pw & c.rd: n = max(n, 2)
            if (c.mn.startswith('v_readlane') or c.mn.startswith('v_readfirstlane')) and pw & c.rd: n = max(n, 1)
            if _sg(p.wr) & c.rd:
                n = max(n, 4 if (c.mn.startswith('v_readlane') or c.mn.startswith('v_writelane')) else 2)
            if ('sdwa' in p.mn or ('op_sel' in p.text and not p.mn.startswith('v_pk_'))) and pw & (c.rd | c.wr): n = max(n, 1)
        if p.mn.startswith('v_dot') and c.kind in ('valu', 'mfma', 'vmem', 'ds') and pw & (c.rd | c.wr):
            if c.mn == p.mn and not (pw & (_regs(c.ops[1]) | _regs(c.ops[2]))): pass
            else: n = max(n, 3)
        if c.kind == 'vmem' and _sg(p.wr) & c.rd: n = max(n, 5)
        if c.kind == 'salu' and _sg(p.wr) & c.rd: n = max(n, 2)
        if c.kind == 'mfma' and ('x', 'exec') in p.wr: n = max(n, 4)
    if p.kind == 'mfma':
        big = 12 if p.passes == 8 else 8
        if c.kind == 'mfma':
            ab = c.rd - c.srcc if c.srcc != c.rd else set()
            ab = _regs(c.ops[1]) | _regs(c.ops[2])
            if p.wr & ab: n = max(n, big)
            if p.wr & c.srcc:
                if p.wr == c.srcc and p.passes == c.passes: n = max(n, 0)
                else: n = max(n, 10 if p.passes == 8 else 6)
            elif p.wr & c.wr:
                n = max(n, 10 if p.passes == 8 else 6)
        elif c.kind in ('valu', 'vmem', 'ds'):
            if p.wr & (c.rd | c.wr): n = max(n, big)
            if c.kind == 'valu' and p.srcc & c.wr: n = max(n, 7 if p.passes == 8 else 3)
    if p.kind == 'salu' and ('x', 'm0') in p.wr and c.kind == 'vmem' and c.lds_dma: n = max(n, 1)
    if p.kind == 'vmem' and p.stdata:
        if c.kind == 'valu' and p.stdata & c.wr: n = max(n, 2)
        elif p.stdata & c.wr: n = max(n, 1)
    return n

class Asm:
    def __init__(self):
        self.lines = []
    def __call__(self, text):
        for ln in text.split('\n'):
            ln = ln.strip()
            if ln:
                self.emit(ln)
    def emit(self, text):
        c = I(text)
        if c.kind not in ('label', 'none', 'nop'):
            dist = 0; req = 0
            for p in reversed(self.lines):
                if dist >= 20: break
                if p.kind not in ('label', 'none', 'nop'):
                    r = need(p, c)
                    if r > dist: req = max(req, r - dist)
                dist += p.nop
            while req > 0:
                k = min(req, 16)
                self.lines.append(I('s_nop %d' % (k - 1)))
                req -= k
        self.lines.append(c)
    def raw(self, text):
        i = I('; raw'); i.text = text; i.kind = 'none'; i.nop = 0
        self.lines.append(i)
    def text(self):
        out = []
        for i in self.lines:
            if i.kind == 'label' or i.text.startswith('.') or i.kind == 'none':
                out.append(i.text)
            else:
                out.append('    ' + i.text)
        return '\n'.join(out) + '\n'

def vr(a, n=1):
    return 'v%d' % a if n == 1 else 'v[%d:%d]' % (a, a + n - 1)
def sr(a, n=1):
    return 's%d' % a if n == 1 else 's[%d:%d]' % (a, a + n - 1)
```

```python
import sys
sys.path.insert(0, 'gen')
from asmlib import *
from common import srd
NAME = 'gated_mix__linear_kernel_hedgehog__moe_arch_mod__prompt'
def desc(name, vgpr, sgpr=102):
    return '''.amdhsa_kernel %s
  .amdhsa_next_free_vgpr %d
  .amdhsa_next_free_sgpr %d
  .amdhsa_accum_offset %d
  .amdhsa_group_segment_fixed_size 0
  .amdhsa_kernarg_size 104
  .amdhsa_user_sgpr_count 2
  .amdhsa_user_sgpr_kernarg_segment_ptr 1
  .amdhsa_system_sgpr_workgroup_id_x 1
.end_amdhsa_kernel
''' % (name, vgpr, sgpr, (vgpr + 3) // 4 * 4)
def wrap(body, lds=163840, grid=256, vg=256):
    hdr = open('/code/%s.s.ref' % NAME).read().split('; Override launch')[0]
    out = hdr + '; @launch kernel=k1_kernel grid=(%d,1,1) block=(512,1,1) lds=%d\n' % (grid, lds)
    out += '.amdgcn_target "amdgcn-amd-amdhsa--gfx950"\n.text\n.globl k1_kernel\n.p2align 8\n.type k1_kernel,@function\n' + body
    out += '.section .rodata,"a"\n.p2align 6\n' + desc('k1_kernel', vg)
    return out
ST0 = 40
class St:
    def __init__(s, A): s.A = A; s.n = 0
    def __call__(s):
        s.A('s_memtime s[%d:%d]' % (ST0 + 2 * s.n, ST0 + 1 + 2 * s.n)); s.n += 1
def dump(A, n, ws_srd=32, wave='s20'):
    A('s_memrealtime s[98:99]')
    A('s_waitcnt vmcnt(0) lgkmcnt(0)')
    A('s_mov_b64 exec, 1')
    A('s_lshl_b32 s3, s2, 3'); A('s_add_u32 s3, s3, %s' % wave); A('s_lshl_b32 s3, s3, 7'); A('s_add_u32 s3, s3, %d' % (12 << 20))
    A('v_mov_b32 v1, 0')
    for i in range(n):
        A('v_mov_b32 v2, s%d' % (ST0 + 2 * i))
        A('buffer_store_dword v2, v1, s[%d:%d], s3 offen offset:%d' % (ws_srd, ws_srd + 3, i * 4))
    A('v_mov_b32 v2, s96'); A('buffer_store_dword v2, v1, s[%d:%d], s3 offen offset:120' % (ws_srd, ws_srd + 3))
    A('v_mov_b32 v2, s98'); A('buffer_store_dword v2, v1, s[%d:%d], s3 offen offset:124' % (ws_srd, ws_srd + 3))
    A('s_waitcnt vmcnt(0)')
def gen(opt):
    A = Asm(); st = St(A)
    A('k1_kernel:')
    st()
    A('s_memrealtime s[96:97]')
    A('s_load_dwordx4 s[4:7], s[0:1], 0')
    A('s_load_dwordx2 s[14:15], s[0:1], 96')
    A('s_cmp_ge_u32 s2, 256')
    A('s_cbranch_scc1 L_end')
    A('''v_lshrrev_b32 v1, 6, v0
    v_and_b32 v2, 63, v0
    v_readfirstlane_b32 s20, v1
    v_lshrrev_b32 v4, 3, v2
    v_lshlrev_b32 v5, 11, v4
    v_and_b32 v6, 7, v2
    v_lshl_add_u32 v10, v6, 4, v5
    v_mul_u32_u24 v5, 6144, v4
    v_lshl_add_u32 v12, v6, 4, v5
    s_and_b32 s16, s2, 7
    s_lshr_b32 s17, s2, 3
    s_and_b32 s18, s16, 1
    s_lshl_b32 s18, s18, 3
    s_and_b32 s19, s17, 7
    s_add_u32 s18, s18, s19
    s_lshr_b32 s19, s16, 1
    s_lshl_b32 s19, s19, 2
    s_lshr_b32 s21, s17, 3
    s_add_u32 s19, s19, s21
    s_lshl_b32 s21, s18, 18
    v_add_u32 v10, s21, v10
    s_lshl_b32 s21, s19, 7
    v_add_u32 v12, s21, v12
    s_and_b32 s22, s19, 3
    s_lshl_b32 s22, s22, 1
    s_add_u32 s22, s22, s18
    s_and_b32 s22, s22, 7
    s_waitcnt lgkmcnt(0)''')
    st()
    srd(A, 24, 4, 4 << 20); srd(A, 28, 6, 6 << 20); srd(A, 32, 14, 32 << 20)
    NT = ' nt' if opt.get('nt') else ''
    for stg in range(opt.get('ns', 1)):
        A('s_add_u32 s23, s22, %d' % stg); A('s_and_b32 s23, s23, 7')
        A('''s_lshl_b32 s36, s23, 7
        s_mul_i32 s37, s23, 393216
        s_lshl_b32 s38, s20, 11
        s_add_u32 s38, s38, %d
        s_mov_b32 m0, s38
        s_lshl_b32 s39, s20, 15
        s_add_u32 s39, s39, s36
        buffer_load_dwordx4 v10, s[24:27], s39 offen%s lds
        s_add_u32 m0, s38, 1024
        s_add_u32 s39, s39, 16384
        buffer_load_dwordx4 v10, s[24:27], s39 offen%s lds
        s_mul_i32 s9, s20, 3''' % (stg * 40960, NT, NT))
        for c in range(3):
            A('s_add_u32 s10, s9, %d' % c); A('s_lshl_b32 s11, s10, 10'); A('s_add_u32 m0, s11, %d' % (16384 + stg * 40960))
            A('s_and_b32 s11, s10, 7'); A('s_mul_i32 s11, s11, 49152'); A('s_lshr_b32 s10, s10, 3'); A('s_lshl_b32 s10, s10, 11')
            A('s_add_u32 s11, s10, s11'); A('s_add_u32 s11, s11, s37')
            A('buffer_load_dwordx4 v12, s[28:31], s11 offen%s lds' % NT)
    st()
    for stg in range(opt.get('ns', 1)):
        A('s_waitcnt vmcnt(%d)' % (5 * (opt.get('ns', 1) - 1 - stg)))
        st()
    A('s_barrier')
    st()
    for blk in range(3):
        for i in range(256): A('v_mov_b32 v%d, v%d' % (20 + (i & 63), 100))
        st()
    A('s_branch L_far')
    for i in range(8192): A('s_nop 0')
    A('L_far:')
    st()
    for i in range(256): A('v_mov_b32 v%d, v%d' % (20 + (i & 63), 100))
    st()
    dump(A, st.n)
    A('L_end:')
    A('s_endpgm')
    print('nst', st.n)
    return wrap(A.text())
if __name__ == '__main__':
    opt = {}; outf = 'mb1.s'
    for x in sys.argv[1:]:
        if x.startswith('-o'): outf = x[2:]
        else:
            k, v = x.split('='); opt[k] = int(v)
    open(outf, 'w').write(gen(opt))
```

```python
import sys
sys.path.insert(0, 'gen'); sys.path.insert(0, 'mb')
from asmlib import *
from common import srd
from mb1 import wrap, dump, St
import mb1
def gen(opt):
    mb1.ST0 = 44
    A = Asm(); st = St(A)
    RS = opt.get('rs', 6144); MS = opt.get('ms', 2048); LP = ['', ' nt'][opt.get('lp', 1)]
    A('k1_kernel:')
    A('s_load_dwordx4 s[4:7], s[0:1], 0')
    A('s_load_dwordx4 s[12:15], s[0:1], 88')
    st()
    A('s_memrealtime s[96:97]')
    A('s_cmp_ge_u32 s2, 256')
    A('s_cbranch_scc1 L_end')
    A('''v_lshrrev_b32 v1, 6, v0
    v_and_b32 v2, 63, v0
    v_readfirstlane_b32 s20, v1
    v_lshrrev_b32 v4, 3, v2
    v_mul_u32_u24 v5, %d, v4
    v_and_b32 v6, 7, v2
    v_lshl_add_u32 v12, v6, 4, v5
    v_lshlrev_b32 v5, 11, v4
    v_lshl_add_u32 v10, v6, 4, v5
    s_and_b32 s16, s2, 7
    s_lshr_b32 s17, s2, 3
    s_and_b32 s18, s16, 1
    s_lshl_b32 s18, s18, 3
    s_and_b32 s19, s17, 7
    s_add_u32 s18, s18, s19
    s_lshr_b32 s19, s16, 1
    s_lshl_b32 s19, s19, 2
    s_lshr_b32 s3, s17, 3
    s_add_u32 s19, s19, s3
    s_add_u32 s21, s18, s19
    s_and_b32 s22, s16, 3
    s_lshl_b32 s22, s22, 2
    s_add_u32 s3, s19, %d
    s_lshl_b32 s3, s3, 7
    v_add_u32 v12, s3, v12
    s_lshl_b32 s3, s18, 18
    v_add_u32 v10, s3, v10
    s_waitcnt lgkmcnt(0)''' % (RS, opt.get('sh', 0)))
    if opt.get('reg'):
        A('s_add_u32 s3, s19, %d' % opt.get('sh', 0)); A('s_lshl_b32 s3, s3, 7'); A('v_subrev_u32 v12, s3, v12')
        A('s_and_b32 s3, s19, %d' % opt.get('msk', 15)); A('s_mul_i32 s3, s3, %d' % opt.get('mul', 1)); A('s_add_u32 s3, s3, %d' % opt.get('add', 0)); A('s_lshl_b32 s3, s3, 7')
        A('s_mul_i32 s8, s19, %d' % (opt['reg'] << 20)); A('s_add_u32 s3, s3, s8'); A('v_add_u32 v12, s3, v12')
    srd(A, 32, 14, 256 << 20); srd(A, 24, 4, 4 << 20)
    if opt.get('ws'): srd(A, 28, 14, 256 << 20)
    else: srd(A, 28, 6, 6 << 20)
    OFF = (32 << 20) if opt.get('ws') else 0
    n = 0
    per = 3 + (2 if opt.get('x', 1) else 0)
    for s in range(16):
        A('s_add_u32 s8, s21, %d' % (s & 3)); A('s_and_b32 s8, s8, 3'); A('s_add_u32 s9, s22, %d' % (s & ~3)); A('s_and_b32 s9, s9, 15'); A('s_add_u32 s8, s8, s9')
        A('s_lshl_b32 s9, s8, 3'); A('s_add_u32 s9, s9, s20'); A('s_mul_i32 s9, s9, %d' % (8 * RS)); A('s_add_u32 s9, s9, %d' % OFF)
        A('s_lshl_b32 s8, s8, 7'); A('s_lshl_b32 s10, s20, 15'); A('s_add_u32 s8, s8, s10')
        b = 32 + (s & 3) * 20
        if opt.get('x', 1):
            A('buffer_load_dwordx4 %s, v10, s[24:27], s8 offen%s' % (vr(b + 12, 4), LP)); A('s_add_u32 s8, s8, 16384')
            A('buffer_load_dwordx4 %s, v10, s[24:27], s8 offen%s' % (vr(b + 16, 4), LP))
        for m in range(3):
            A('buffer_load_dwordx4 %s, v12, s[28:31], s9 offen%s' % (vr(b + 4 * m, 4), LP))
            A('s_add_u32 s9, s9, %d' % MS)
        if s >= 2:
            A('s_waitcnt vmcnt(%d)' % (2 * per)); A('s_barrier')
            if (s - 2) in (0, 4, 8, 12): st()
    A('s_waitcnt vmcnt(0)')
    st()
    dump(A, st.n)
    A('L_end:')
    A('s_endpgm')
    return wrap(A.text(), lds=163840)
if __name__ == '__main__':
    opt = {}; outf = 'mb15.s'
    for x in sys.argv[1:]:
        if x.startswith('-o'): outf = x[2:]
        else:
            k, v = x.split('='); opt[k] = int(v)
    open(outf, 'w').write(gen(opt))
```
